```python
import torch

def _softmax(x, axis=-1):
    return torch.softmax(x, dim=axis)
def _gelu(x):
    return torch.nn.functional.gelu(x, approximate="tanh")
def _silu(x):
    return torch.nn.functional.silu(x)
def _sigmoid(x):
    return torch.sigmoid(x)
def _layernorm(x, axis=-1, eps=1e-5):
    m = x.mean(dim=axis, keepdim=True)
    v = x.var(dim=axis, keepdim=True, unbiased=False)
    return (x - m) / torch.sqrt(v + eps)
def _scatter_add(tgt, idx, src, axis=0):
    return tgt.clone().index_add_(axis, idx, src)
def _segment_sum(src, seg, n):
    out = torch.zeros((n,) + src.shape[1:], dtype=src.dtype)
    return out.index_add_(0, seg, src)
def _pad(x, pw):
    flat = tuple(v for pair in reversed(pw) for v in pair)
    return torch.nn.functional.pad(x, flat)

kernel_name = 'recurrent_scan__ssm_conv_s5__glu_gated_bilinear__prompt'

def setup_inputs():

    _w = (lambda a: (lambda t: t.to(torch.bfloat16) if t.is_floating_point() else t)(torch.as_tensor(a)))
    def _A_setup():
        B, S, D = 1, 2048, 512
        P = D
        Lambda_re = -0.5 * (lambda _x: torch.exp(torch.as_tensor(_x)))((lambda *s: torch.randn(*s, dtype=torch.bfloat16) * 0.8)(P))
        Lambda_im = (lambda *s: torch.randn(*s, dtype=torch.bfloat16) * 0.8)(P) * 1.0
        B_re = (lambda *s: torch.randn(*s, dtype=torch.bfloat16) * 1.6)(P, D) * (D ** -0.5)
        B_im = (lambda *s: torch.randn(*s, dtype=torch.bfloat16) * 0.8)(P, D) * (D ** -0.5)
        C_re = (lambda *s: torch.randn(*s, dtype=torch.bfloat16) * 1.6)(D, P) * (P ** -0.5)
        C_im = (lambda *s: torch.randn(*s, dtype=torch.bfloat16) * 0.8)(D, P) * (P ** -0.5)
        log_dt = (lambda *s: torch.randn(*s, dtype=torch.bfloat16) * 0.8)(P) * 0.3 - 2.0
        Dskip = (lambda *s: torch.randn(*s, dtype=torch.bfloat16) * 0.8)(D)
        return {
            "x": _w((lambda *s: torch.randn(*s, dtype=torch.bfloat16) * 0.05)(B, S, D)),
            "Lambda_re": _w(Lambda_re),
            "Lambda_im": _w(Lambda_im),
            "B_re": _w(B_re),
            "B_im": _w(B_im),
            "C_re": _w(C_re),
            "C_im": _w(C_im),
            "log_dt": _w(log_dt),
            "Dskip": _w(Dskip),
        }
    _A_in = _A_setup()

    def _B_setup():
        B, S, D, F = 1, 2048, 512, 1792
        return {
            "x": _w((lambda *s: torch.randn(*s, dtype=torch.bfloat16) * 0.05)(B, S, D)),
            "w_gate": _w((lambda *s: torch.randn(*s, dtype=torch.bfloat16) * 0.2)(D, F) * (D ** -0.5)),
            "w_up": _w((lambda *s: torch.randn(*s, dtype=torch.bfloat16) * 0.2)(D, F) * (D ** -0.5)),
            "w_down": _w((lambda *s: torch.randn(*s, dtype=torch.bfloat16) * 0.2)(F, D) * (F ** -0.5)),
        }
    _B_in = _B_setup()

    return {
        "A_x": _A_in["x"],
        "A_Lambda_re": _A_in["Lambda_re"],
        "A_Lambda_im": _A_in["Lambda_im"],
        "A_B_re": _A_in["B_re"],
        "A_B_im": _A_in["B_im"],
        "A_C_re": _A_in["C_re"],
        "A_C_im": _A_in["C_im"],
        "A_log_dt": _A_in["log_dt"],
        "A_Dskip": _A_in["Dskip"],
        "B_x": _B_in["x"],
        "B_w_gate": _B_in["w_gate"],
        "B_w_up": _B_in["w_up"],
        "B_w_down": _B_in["w_down"],
    }

def reference(A_x, A_Lambda_re, A_Lambda_im, A_B_re, A_B_im, A_C_re, A_C_im, A_log_dt, A_Dskip, B_x, B_w_gate, B_w_up, B_w_down):
    def _A_ref(x, Lambda_re, Lambda_im, B_re, B_im, C_re, C_im, log_dt, Dskip):
        Bsz, L, H = x.shape
        Lam = Lambda_re + 1j * Lambda_im
        Bmat = B_re + 1j * B_im
        Cmat = C_re + 1j * C_im
        dt = torch.exp(log_dt)
        Lam_bar = torch.exp(dt * Lam)
        B_bar = ((Lam_bar - 1.0) / Lam)[:, None] * Bmat
        Bu = torch.einsum("bld,pd->blp", x + 0j, B_bar)
        h = torch.zeros_like(Bu[:, 0, :])
        hs = []
        for t in range(L):
            h = Lam_bar[None, :] * h + Bu[:, t, :]
            hs.append(h)
        hseq = torch.stack(hs, 1)
        y = 2.0 * torch.einsum("blp,dp->bld", hseq, Cmat).real + x * Dskip[None, None, :]
        return y

    def _B_ref(x, w_gate, w_up, w_down):
        g = torch.einsum("bsd,df->bsf", x, w_gate)
        u = torch.einsum("bsd,df->bsf", x, w_up)
        h = g * u
        return torch.einsum("bsf,fd->bsd", h, w_down)

    x = A_x
    xn = _layernorm(x, axis=-1)
    s = _A_ref(xn, A_Lambda_re, A_Lambda_im, A_B_re, A_B_im, A_C_re, A_C_im, A_log_dt, A_Dskip)
    g = _silu(_B_ref(xn, B_w_gate, B_w_up, B_w_down))
    return x + s * g
```

```python
class Asm:
    def __init__(self):
        self.lines = []
        self._uid = 0

    def __call__(self, s):
        for ln in s.strip("\n").split("\n"):
            ln = ln.strip()
            if not ln:
                continue
            if ln.endswith(":") and " " not in ln:
                self.lines.append(ln)
            else:
                self.lines.append("    " + ln)

    def label(self, name):
        self.lines.append(name + ":")

    def uid(self, prefix="L"):
        self._uid += 1
        return f"{prefix}_{self._uid}"

    def comment(self, s):
        self.lines.append("    ; " + s)

    def text(self):
        return "\n".join(self.lines) + "\n"

    def srd(self, d, base, nbytes):
        self(f"s_mov_b32 s{d}, s{base}")
        self(f"s_mov_b32 s{d+1}, s{base+1}")
        self(f"s_mov_b32 s{d+2}, {nbytes}")
        self(f"s_mov_b32 s{d+3}, 0x00020000")

    def srd_off(self, d, base, off, nbytes):
        self(f"s_add_u32 s{d}, s{base}, {off}")
        self(f"s_addc_u32 s{d+1}, s{base+1}, 0")
        self(f"s_mov_b32 s{d+2}, {nbytes}")
        self(f"s_mov_b32 s{d+3}, 0x00020000")

    def rbf(self, dst, src, tmp):
        self(f"v_cvt_pk_bf16_f32 v{tmp}, v{src}, v{src}")
        self(f"v_lshlrev_b32 v{dst}, 16, v{tmp}")

    def wave_sum(self, v, lane4, tmpa, tmpb):
        for m in (1, 2, 4, 8, 16, 32):
            self(f"v_xor_b32 v{tmpa}, {m*4}, v{lane4}")
            self(f"ds_bpermute_b32 v{tmpb}, v{tmpa}, v{v}")
            self("s_waitcnt lgkmcnt(0)")
            self(f"v_add_f32 v{v}, v{v}, v{tmpb}")


def kernel_header(name):
    return (f".text\n.globl {name}\n.p2align 8\n.type {name},@function\n{name}:\n")


def kernel_desc(name, vgpr, sgpr, accum):
    return (f".section .rodata,\"a\"\n.p2align 6\n.amdhsa_kernel {name}\n"
            f"  .amdhsa_next_free_vgpr {vgpr}\n  .amdhsa_next_free_sgpr {sgpr}\n"
            f"  .amdhsa_accum_offset {accum}\n  .amdhsa_group_segment_fixed_size 0\n"
            f"  .amdhsa_kernarg_size 128\n  .amdhsa_user_sgpr_count 2\n"
            f"  .amdhsa_user_sgpr_kernarg_segment_ptr 1\n"
            f"  .amdhsa_system_sgpr_workgroup_id_x 1\n.end_amdhsa_kernel\n")
```

```python
from asmlib import Asm, kernel_header, kernel_desc
from layout import *
from prep import emit_lambda_bar

STAGE = 26 * 1024
NBUF = 5
K1_LDS = STAGE * NBUF
NKS = 16
ACC0 = 0


def acc(tb, j):
    return (j * 4 + tb) * 4


def fragA(s, tb):
    return 32 + s * 52 + tb * 4


def fragB(s, j):
    return 32 + s * 52 + 16 + j * 4


def gen_k1(name="k1_kernel"):
    a = Asm()
    a("s_cmp_ge_u32 s2, 256")
    a("s_cbranch_scc1 K1_done")
    a("s_load_dwordx2 s[4:5], s[0:1], 120")
    a("s_load_dwordx2 s[36:37], s[0:1], 112")
    a("s_lshr_b32 s6, s2, 4")
    a("s_and_b32 s7, s2, 15")
    a("v_lshrrev_b32 v1, 6, v0")
    a("v_and_b32 v2, 63, v0")
    a("s_nop 0")
    a("v_readfirstlane_b32 s8, v1")
    a("s_and_b32 s9, s8, 1")
    a("s_lshr_b32 s10, s8, 1")
    a("s_waitcnt lgkmcnt(0)")
    a.srd_off(12, 4, WS_XN, XN_BYTES)
    a.srd_off(16, 4, WS_W1, W1_BYTES)
    a.srd_off(20, 4, WS_H, H_BYTES)
    a.srd_off(24, 4, WS_HG, HG_BYTES)
    a.srd_off(28, 4, WS_ENDS, ENDS_BYTES)
    a.srd(32, 36, 256)
    a("v_lshlrev_b32 v3, 4, v2")
    a("s_lshl_b32 s40, s6, 3")
    a("s_lshl_b32 s41, s8, 1")
    a("s_add_u32 s40, s40, s41")
    a("s_lshl_b32 s40, s40, 14")
    a("v_add_u32 v4, s40, v3")
    a(f"s_mul_i32 s41, s7, {16*18*1024}")
    a("s_lshl_b32 s42, s8, 12")
    a("s_add_u32 s42, s42, s41")
    a("v_add_u32 v5, s42, v3")
    a("s_and_b32 s42, s8, 1")
    a("s_lshl_b32 s42, s42, 10")
    a(f"s_add_u32 s42, s42, {16*1024}")
    a("s_add_u32 s43, s42, s41")
    a("v_add_u32 v6, s43, v3")
    a("s_lshl_b32 s44, s8, 11")
    a("s_lshl_b32 s45, s8, 12")
    a("s_add_u32 s45, s45, 8192")
    a("s_add_u32 s46, s42, 8192")
    a("s_lshl_b32 s47, s9, 12")
    a("v_add_u32 v7, s47, v3")
    a(f"v_add_u32 v8, {2*STAGE}, v7")
    a(f"v_add_u32 v9, {4*STAGE}, v7")
    a(f"s_mul_i32 s47, s10, {9*1024}")
    a("s_add_u32 s47, s47, 8192")
    a("v_add_u32 v10, s47, v3")
    a(f"v_add_u32 v11, {2*STAGE}, v10")
    a(f"v_add_u32 v12, {4*STAGE}, v10")

    def dma_group(ks):
        base = (ks % NBUF) * STAGE
        L = []
        L.append(f"s_mov_b32 s48, {ks*1024}")
        L.append(f"s_add_u32 m0, s44, {base}")
        L.append(f"s_mov_b32 s49, {ks*1024+16384}")
        L.append("buffer_load_dwordx4 v4, s[12:15], s48 offen lds")
        L.append(f"s_add_u32 m0, s44, {base+1024}")
        L.append(f"s_mov_b32 s50, {ks*18*1024}")
        L.append("buffer_load_dwordx4 v4, s[12:15], s49 offen lds")
        L.append(f"s_add_u32 m0, s45, {base}")
        L.append("s_nop 0")
        for q in range(4):
            L.append(f"buffer_load_dwordx4 v5, s[16:19], s50 offen offset:{q*1024} lds")
        L.append(f"s_add_u32 m0, s46, {base}")
        L.append("s_nop 0")
        L.append("buffer_load_dwordx4 v6, s[16:19], s50 offen lds")
        return L

    def frag_reads(ks):
        s = ks % 2
        buf = ks % NBUF
        va = 7 + buf // 2
        vb = 10 + buf // 2
        off = (buf % 2) * STAGE
        L = []
        for j in range(9):
            if j < 4:
                L.append(f"ds_read_b128 v[{fragA(s,j)}:{fragA(s,j)+3}], v{va} offset:{off+j*1024}")
            L.append(f"ds_read_b128 v[{fragB(s,j)}:{fragB(s,j)+3}], v{vb} offset:{off+j*1024}")
        return L

    def mfmas(ks, first):
        s = ks % 2
        L = []
        for j in range(9):
            for tb in range(4):
                A = f"v[{fragA(s,tb)}:{fragA(s,tb)+3}]"
                B = f"v[{fragB(s,j)}:{fragB(s,j)+3}]"
                c = acc(tb, j)
                C = "0" if first else f"a[{c}:{c+3}]"
                L.append((A, B, c, C, j))
        return L

    for ks in range(NBUF):
        for ins in dma_group(ks):
            a(ins)
    a(f"s_waitcnt vmcnt({7*(NBUF-1)})")
    a("s_barrier")
    for ins in frag_reads(0):
        a(ins)
    a("s_cmp_eq_u32 s10, 0")
    a("s_cbranch_scc0 K1_main1")
    for wn in range(2):
        if wn == 1:
            a.label("K1_main1")
        for ks in range(NKS):
            issued = min(ks + NBUF - 1, NKS - 1)
            vm = max(0, issued - (ks + 1)) * 7
            a(f"s_waitcnt vmcnt({vm}) lgkmcnt(0)")
            a("s_barrier")
            X = []
            if ks + NBUF < NKS:
                X += dma_group(ks + NBUF)
            if ks + 1 < NKS:
                X += frag_reads(ks + 1)
            M = []
            for (A, B, c, C, j) in mfmas(ks, ks == 0):
                if wn == 0 and j < 4:
                    M.append(f"v_mfma_f32_16x16x32_bf16 a[{c}:{c+3}], {A}, {B}, {C}")
                else:
                    M.append(f"v_mfma_f32_16x16x32_bf16 a[{c}:{c+3}], {B}, {A}, {C}")
            xi = 0
            for m in M:
                a(m)
                if xi < len(X):
                    a(X[xi]); xi += 1
            while xi < len(X):
                a(X[xi]); xi += 1
        a("s_nop 7")
        a("s_nop 7")
        a("s_barrier")
        if wn == 0:
            ssm_pass1(a)
            glu_epilogue(a, range(4, 9), 0)
            ssm_pass2(a)
            a("s_endpgm")
        else:
            glu_epilogue(a, range(0, 9), 1)
    a.label("K1_done")
    a("s_endpgm")
    return kernel_header(name) + a.text() + kernel_desc(name, 160 + 144, 96, 160)


def glu_epilogue(a, tiles, wn):
    a.comment("---- GLU epilogue")
    a("v_and_b32 v140, 15, v2")
    a("v_lshlrev_b32 v140, 4, v140")
    a("v_lshrrev_b32 v141, 4, v2")
    a("v_lshl_add_u32 v140, v141, 2, v140")
    a("s_mul_i32 s52, s7, 14")
    a("s_lshl_b32 s53, s6, 3")
    a("s_lshl_b32 s54, s9, 2")
    a("s_add_u32 s53, s53, s54")
    a(f"s_mul_i32 s53, s53, {56*1024}")
    a("s_mov_b32 s55, 0xffff0000")
    for j in tiles:
        T = (j - 4) if wn == 0 else (j + 5)
        a(f"s_add_u32 s56, s52, {T}")
        a("s_lshl_b32 s56, s56, 8")
        a("s_add_u32 s56, s56, s53")
        for tb in range(4):
            c = acc(tb, j)
            for r in range(4):
                a(f"v_accvgpr_read_b32 v{142+r}, a{c+r}")
            a("v_cvt_pk_bf16_f32 v146, v142, v143")
            a("v_cvt_pk_bf16_f32 v147, v144, v145")
            a("v_lshlrev_b32 v142, 16, v146")
            a("v_and_b32 v143, s55, v146")
            a("v_lshlrev_b32 v144, 16, v147")
            a("v_and_b32 v145, s55, v147")
            a("v_mul_f32 v142, v142, v143")
            a("v_mul_f32 v144, v144, v145")
            a(f"v_cvt_pk_bf16_f32 v{148+tb}, v142, v144")
            a(f"s_add_u32 s57, s56, {tb*56*1024}")
            a(f"buffer_store_dword v{148+tb}, v140, s[24:27], s57 offen")


def cstep(a, hr, hi, nr, ni, ur, ui):
    a(f"v_fma_f32 v{nr}, v102, v{hr}, v{ur}")
    a(f"v_fma_f32 v{ni}, v102, v{hi}, v{ui}")
    a(f"v_fma_f32 v{nr}, -v103, v{hi}, v{nr}")
    a(f"v_fma_f32 v{ni}, v103, v{hr}, v{ni}")


def scan_pass(a, write_out):
    for b in range(4):
        pass
    def reads(b):
        for t in range(16):
            r = 32 + 32 * (b % 2) + 2 * t
            a(f"ds_read_b64 v[{r}:{r+1}], v104 offset:{(16*b+t)*256}")
    reads(0)
    cur = 96
    for b in range(4):
        if b + 1 < 4:
            reads(b + 1)
        for t in range(16):
            left = (16 - 1 - t) + (16 if b + 1 < 4 else 0)
            a(f"s_waitcnt lgkmcnt({min(left,15)})" if not write_out else f"s_waitcnt lgkmcnt({min(left,15)})")
            r = 32 + 32 * (b % 2) + 2 * t
            nxt = 98 if cur == 96 else 96
            cstep(a, cur, cur + 1, nxt, nxt + 1, r, r + 1)
            cur = nxt
            if write_out:
                a(f"v_cvt_pk_bf16_f32 v100, v{cur}, v{cur+1}")
                a(f"ds_write_b32 v105, v100 offset:{(16*b+t)*128}")
    assert cur == 96


def ssm_pass1(a):
    a.comment("---- SSM: Bu tile -> LDS, local scan, publish chunk end")
    a("s_mul_i32 s60, s9, 24576")
    a("v_and_b32 v140, 15, v2")
    a("v_lshlrev_b32 v140, 3, v140")
    a("v_lshrrev_b32 v141, 4, v2")
    a("v_lshl_add_u32 v140, v141, 10, v140")
    a("v_add_u32 v140, s60, v140")
    for tb in range(4):
        for q in range(2):
            for r in range(4):
                a(f"v_accvgpr_read_b32 v142, a{acc(tb,2*q)+r}")
                a(f"v_accvgpr_read_b32 v143, a{acc(tb,2*q+1)+r}")
                a(f"ds_write_b64 v140, v[142:143] offset:{tb*4096+r*256+q*128}")
    a("s_load_dwordx2 s[62:63], s[0:1], 8")
    a("s_load_dwordx2 s[64:65], s[0:1], 16")
    a("s_load_dwordx2 s[66:67], s[0:1], 56")
    a("s_waitcnt lgkmcnt(0)")
    a.srd(68, 62, P * 2)
    a.srd(72, 64, P * 2)
    a.srd(76, 66, P * 2)
    a("v_and_b32 v106, 31, v2")
    a("s_lshl_b32 s61, s7, 5")
    a("v_add_u32 v107, s61, v106")
    a("v_lshlrev_b32 v108, 1, v107")
    a("buffer_load_ushort v109, v108, s[68:71], 0 offen")
    a("buffer_load_ushort v110, v108, s[72:75], 0 offen")
    a("buffer_load_ushort v111, v108, s[76:79], 0 offen")
    a("v_lshl_add_u32 v104, v106, 3, s60")
    a("v_lshl_add_u32 v105, v106, 2, s60")
    a("v_add_u32 v105, 16384, v105")
    a("s_waitcnt vmcnt(0)")
    emit_lambda_bar(a, lre=109, lim=110, ldt=111, out_re=102, out_im=103, t0=112, t1=113, t2=114)
    a("v_mov_b32 v96, 0")
    a("v_mov_b32 v97, 0")
    a("s_waitcnt lgkmcnt(0)")
    scan_pass(a, False)
    a("s_lshl_b32 s58, s6, 1")
    a("s_add_u32 s58, s58, s9")
    a("s_lshl_b32 s59, s58, 12")
    a("v_lshlrev_b32 v115, 3, v107")
    a("buffer_store_dwordx2 v[96:97], v115, s[28:31], s59 offen sc1")
    a("s_lshl_b32 s61, 1, s58")
    a("v_mov_b32 v116, s61")
    a("s_lshl_b32 s80, s7, 2")
    a("v_mov_b32 v117, s80")
    a("s_waitcnt vmcnt(0)")
    a("s_mov_b64 s[82:83], exec")
    a("s_mov_b64 exec, 1")
    a("buffer_atomic_or v116, v117, s[32:35], 0 offen")
    a("s_mov_b64 exec, s[82:83]")


def ssm_pass2(a):
    a.comment("---- SSM: wait for earlier chunks, carry, final scan")
    a("s_lshl_b32 s61, 1, s58")
    a("s_sub_u32 s61, s61, 1")
    a("s_mov_b32 s84, 0")
    a.label("K1_poll")
    a("buffer_load_dword v118, v117, s[32:35], 0 offen sc1")
    a("s_waitcnt vmcnt(0)")
    a("v_readfirstlane_b32 s85, v118")
    a("s_and_b32 s85, s85, s61")
    a("s_cmp_eq_u32 s85, s61")
    a("s_cbranch_scc1 K1_polled")
    a("s_add_u32 s84, s84, 1")
    a("s_cmp_ge_u32 s84, 0x400000")
    a("s_cbranch_scc1 K1_polled")
    a("s_sleep 2")
    a("s_branch K1_poll")
    a.label("K1_polled")
    for j in range(31):
        a(f"s_mov_b32 s{86+(j%2)}, {j*4096}")
        a(f"buffer_load_dwordx2 v[{32+2*j}:{33+2*j}], v115, s[28:31], s{86+(j%2)} offen sc1")
    a("v_mov_b32 v120, v102")
    a("v_mov_b32 v121, v103")
    for it in range(6):
        a("v_mul_f32 v122, v121, v121")
        a("v_mul_f32 v123, v120, v121")
        a("v_fma_f32 v120, v120, v120, -v122")
        a("v_add_f32 v121, v123, v123")
    a("v_mov_b32 v96, 0")
    a("v_mov_b32 v97, 0")
    a("s_waitcnt vmcnt(0)")
    for j in range(31):
        a(f"s_cmp_le_u32 s58, {j}")
        a("s_cbranch_scc1 K1_carry_done")
        a(f"v_fma_f32 v98, v120, v96, v{32+2*j}")
        a(f"v_fma_f32 v99, v120, v97, v{33+2*j}")
        a("v_fma_f32 v98, -v121, v97, v98")
        a("v_fma_f32 v97, v121, v96, v99")
        a("v_mov_b32 v96, v98")
    a.label("K1_carry_done")
    scan_pass(a, True)
    a("s_waitcnt lgkmcnt(0)")
    a("v_and_b32 v140, 15, v2")
    a("v_lshlrev_b32 v140, 7, v140")
    a("v_lshrrev_b32 v141, 4, v2")
    a("v_lshl_add_u32 v140, v141, 4, v140")
    a("s_add_u32 s60, s60, 16384")
    a("v_add_u32 v140, s60, v140")
    a("s_lshl_b32 s53, s6, 3")
    a("s_lshl_b32 s54, s9, 2")
    a("s_add_u32 s53, s53, s54")
    a("s_lshl_b32 s53, s53, 15")
    a("s_lshl_b32 s54, s7, 11")
    a("s_add_u32 s53, s53, s54")
    for tb in range(4):
        for k in range(2):
            r = 32 + (tb * 2 + k) * 4
            a(f"ds_read_b128 v[{r}:{r+3}], v140 offset:{tb*2048+k*64}")
    for tb in range(4):
        for k in range(2):
            r = 32 + (tb * 2 + k) * 4
            a(f"s_add_u32 s57, s53, {tb*32768+k*1024}")
            a(f"s_waitcnt lgkmcnt({7-(tb*2+k)})")
            a(f"buffer_store_dwordx4 v[{r}:{r+3}], v3, s[20:23], s57 offen")
```

```python
from asmlib import Asm, kernel_header, kernel_desc
from layout import *

K2_LDS = 131072
NST = 3

def gen_k2(name="k2_kernel"):
    a = Asm()
    a("s_cmp_ge_u32 s2, 256")
    a("s_cbranch_scc1 K2_done")
    a("s_load_dwordx2 s[4:5], s[0:1], 120")
    a("s_load_dwordx2 s[36:37], s[0:1], 0")
    a("s_load_dwordx2 s[38:39], s[0:1], 104")
    a("s_and_b32 s6, s2, 7")
    a("s_lshr_b32 s7, s2, 3")
    a("s_lshl_b32 s6, s6, 2")
    a("s_and_b32 s8, s7, 3")
    a("s_add_u32 s6, s6, s8")
    a("s_lshr_b32 s7, s7, 2")
    a("v_lshrrev_b32 v1, 6, v0")
    a("v_and_b32 v2, 63, v0")
    a("s_nop 0")
    a("v_readfirstlane_b32 s8, v1")
    a("s_waitcnt lgkmcnt(0)")
    a.srd_off(12, 4, WS_H, H_BYTES)
    a.srd_off(16, 4, WS_W2C, W2C_BYTES)
    a.srd_off(20, 4, WS_HG, HG_BYTES)
    a.srd_off(24, 4, WS_W2D, W2D_BYTES)
    a.srd_off(28, 4, WS_SK, SK_BYTES)
    a.srd(32, 36, S * D * 2)
    a.srd(40, 38, S * D * 4)
    a("v_lshlrev_b32 v3, 4, v2")
    a("s_lshl_b32 s44, s6, 17")
    a("s_lshl_b32 s45, s8, 13")
    a("s_add_u32 s44, s44, s45")
    a("s_lshl_b32 s46, s7, 17")
    a("s_add_u32 s46, s46, s45")
    a(f"s_mul_i32 s47, s6, {4*56*1024}")
    a(f"s_mul_i32 s45, s8, {14*1024}")
    a("s_add_u32 s47, s47, s45")
    a(f"s_mul_i32 s48, s7, {4*56*1024}")
    a("s_add_u32 s48, s48, s45")

    def loads(i):
        s = i % NST
        L = []
        for q in range(4):
            r = 32 + s * 32 + q * 4
            if i < 8:
                L.append(f"s_add_u32 s50, s44, {q*32768+i*1024}")
                L.append(f"buffer_load_dwordx4 v[{r}:{r+3}], v3, s[12:15], s50 offen")
                L.append(f"s_add_u32 s51, s46, {q*32768+i*1024}")
                L.append(f"buffer_load_dwordx4 v[{r+16}:{r+19}], v3, s[16:19], s51 offen")
            else:
                k = i - 8
                L.append(f"s_add_u32 s50, s47, {q*56*1024+k*1024}")
                L.append(f"buffer_load_dwordx4 v[{r}:{r+3}], v3, s[20:23], s50 offen")
                L.append(f"s_add_u32 s51, s48, {q*56*1024+k*1024}")
                L.append(f"buffer_load_dwordx4 v[{r+16}:{r+19}], v3, s[24:27], s51 offen")
        return L
    NK = 22
    for i in range(NST - 1):
        for x in loads(i): a(x)
    for i in range(NK):
        X = loads(i + NST - 1) if i + NST - 1 < NK else []
        inflight = min(NK - 1, i + NST - 2) - i
        a(f"s_waitcnt vmcnt({inflight*8})")
        s = i % NST
        M = []
        for dj in range(4):
            for tb in range(4):
                c = (dj * 4 + tb) * 4 + (0 if i < 8 else 64)
                first = (i == 0 or i == 8)
                C = "0" if first else f"a[{c}:{c+3}]"
                ra = 32 + s * 32 + tb * 4; rb = 32 + s * 32 + 16 + dj * 4
                M.append(f"v_mfma_f32_16x16x32_bf16 a[{c}:{c+3}], v[{ra}:{ra+3}], v[{rb}:{rb+3}], {C}")
        xi = 0
        for m in M:
            a(m)
            for _ in range(1):
                if xi < len(X): a(X[xi]); xi += 1
        while xi < len(X): a(X[xi]); xi += 1
    a("s_nop 7"); a("s_nop 7")
    a("v_and_b32 v4, 15, v2")
    a("v_lshlrev_b32 v4, 2, v4")
    a("v_lshrrev_b32 v5, 4, v2")
    a("v_lshl_add_u32 v4, v5, 10, v4")
    a("s_lshl_b32 s52, s8, 15")
    a("v_add_u32 v4, s52, v4")
    for wh in range(2):
        for dj in range(4):
            for tb in range(4):
                for r in range(4):
                    a(f"v_accvgpr_read_b32 v{8+r}, a{(dj*4+tb)*4+wh*64+r}")
                for r in range(4):
                    a(f"ds_write_b32 v4, v{8+r} offset:{wh*16384+tb*4096+r*256+dj*64}")
    a("s_waitcnt lgkmcnt(0)")
    a("s_barrier")
    a("v_lshrrev_b32 v4, 2, v0")
    a("v_and_b32 v5, 3, v0")
    a("v_lshlrev_b32 v6, 8, v4")
    a("v_lshl_add_u32 v6, v5, 6, v6")
    a("v_add_u32 v11, 0x10000, v6")
    a("s_lshl_b32 s53, s6, 6")
    a("v_add_u32 v7, s53, v4")
    a("v_lshlrev_b32 v8, 9, v7")
    a("s_lshl_b32 s54, s7, 6")
    a("v_add_u32 v8, s54, v8")
    a("v_lshl_add_u32 v8, v5, 4, v8")
    a("v_lshlrev_b32 v9, 1, v8")
    a("v_lshlrev_b32 v10, 2, v8")
    a("buffer_load_dwordx4 v[96:99], v9, s[32:35], 0 offen")
    a("buffer_load_dwordx4 v[100:103], v9, s[32:35], 0 offen offset:16")
    a("buffer_load_dwordx4 v[104:107], v9, s[28:31], 0 offen")
    a("buffer_load_dwordx4 v[108:111], v9, s[28:31], 0 offen offset:16")
    for wh in range(2):
        for w in range(4):
            for q in range(4):
                r = 32 + wh * 16 + q * 4 if w == 0 else 64 + q * 4
                a(f"ds_read_b128 v[{r}:{r+3}], v{6 if w<2 else 11} offset:{(w%2)*32768+wh*16384+q*16}")
            if w:
                a("s_waitcnt lgkmcnt(0)")
                for e in range(16):
                    a(f"v_add_f32 v{32+wh*16+e}, v{32+wh*16+e}, v{64+e}")
    a("s_mov_b32 s55, 0xffff0000")
    a("s_waitcnt vmcnt(0)")
    for j in range(8):
        a(f"v_lshlrev_b32 v{64+2*j}, 16, v{96+j}")
        a(f"v_and_b32 v{65+2*j}, s55, v{96+j}")
        a(f"v_lshlrev_b32 v{80+2*j}, 16, v{104+j}")
        a(f"v_and_b32 v{81+2*j}, s55, v{104+j}")
    for e in range(16):
        y, g = 32 + e, 48 + e
        a(f"v_fma_f32 v{y}, 2.0, v{y}, v{80+e}")
        a.rbf(g, g, 112)
        a(f"v_mul_f32 v113, 0xbfb8aa3b, v{g}")
        a("v_exp_f32 v113, v113")
        a("s_nop 0")
        a("v_add_f32 v113, 1.0, v113")
        a("v_rcp_f32 v113, v113")
        a("s_nop 0")
        a(f"v_mul_f32 v113, v{g}, v113")
        a.rbf(113, 113, 112)
        a(f"v_fma_f32 v{64+e}, v{y}, v113, v{64+e}")
    for q in range(4):
        a(f"buffer_store_dwordx4 v[{64+4*q}:{67+4*q}], v10, s[40:43], 0 offen offset:{16*q}")
    a.label("K2_done")
    a("s_endpgm")
    return kernel_header(name) + a.text() + kernel_desc(name, 128 + 128, 64, 128)
```

```python
S, D, P, F = 2048, 512, 512, 1792

WS_XN, XN_BYTES = 0x0000000, S * D * 2
WS_SK, SK_BYTES = 0x0200000, S * D * 2
WS_W1, W1_BYTES = 0x0400000, 16 * 16 * 18 * 1024
WS_W2C, W2C_BYTES = 0x0A00000, 32 * 32 * 1024
WS_W2D, W2D_BYTES = 0x0B00000, 32 * 56 * 1024
WS_H, H_BYTES = 0x1000000, 128 * 32 * 1024
WS_HG, HG_BYTES = 0x1400000, 128 * 56 * 1024
WS_ENDS, ENDS_BYTES = 0x1C00000, 32 * 512 * 8
WS_TOTAL = 0x1D00000
```

```python
from asmlib import Asm, kernel_header, kernel_desc
from layout import *

N_LN, N_W1G, N_W1S, N_W2C, N_W2D = 512, 512, 128, 256, 448
B_LN = 0
B_W1G = B_LN + N_LN
B_W1S = B_W1G + N_W1G
B_W2C = B_W1S + N_W1S
B_W2D = B_W2C + N_W2C
PREP_WGS = B_W2D + N_W2D


def gen_prep(name="prep_kernel"):
    a = Asm()
    a(f"s_cmp_ge_u32 s2, {PREP_WGS}")
    a("s_cbranch_scc1 P_done")
    a("s_load_dwordx2 s[4:5], s[0:1], 120")
    a(f"s_cmp_ge_u32 s2, {B_W2D}")
    a("s_cbranch_scc1 P_w2d")
    a(f"s_cmp_ge_u32 s2, {B_W2C}")
    a("s_cbranch_scc1 P_w2c")
    a(f"s_cmp_ge_u32 s2, {B_W1S}")
    a("s_cbranch_scc1 P_w1s")
    a(f"s_cmp_ge_u32 s2, {B_W1G}")
    a("s_cbranch_scc1 P_w1g")

    a("s_load_dwordx2 s[6:7], s[0:1], 0")
    a("s_load_dwordx2 s[8:9], s[0:1], 64")
    a("s_waitcnt lgkmcnt(0)")
    a.srd(12, 6, S * D * 2)
    a.srd(16, 8, D * 2)
    a.srd_off(20, 4, WS_XN, XN_BYTES)
    a.srd_off(24, 4, WS_SK, SK_BYTES)
    a("v_and_b32 v1, 63, v0")
    a("v_lshrrev_b32 v2, 6, v0")
    a("s_lshl_b32 s3, s2, 2")
    a("v_add_u32 v3, s3, v2")
    a("v_lshlrev_b32 v4, 10, v3")
    a("v_lshl_add_u32 v4, v1, 4, v4")
    a("v_lshlrev_b32 v5, 4, v1")
    a("buffer_load_dwordx4 v[8:11], v4, s[12:15], 0 offen")
    a("buffer_load_dwordx4 v[12:15], v5, s[16:19], 0 offen")
    a("v_lshlrev_b32 v6, 2, v1")
    a("s_mov_b32 s30, 0xffff0000")
    a("s_waitcnt vmcnt(1)")
    for j in range(4):
        a(f"v_lshlrev_b32 v{16+2*j}, 16, v{8+j}")
        a(f"v_and_b32 v{17+2*j}, s30, v{8+j}")
    a("v_add_f32 v24, v16, v17")
    for j in range(2, 8):
        a(f"v_add_f32 v24, v24, v{16+j}")
    a.wave_sum(24, 6, 25, 26)
    a("v_mul_f32 v24, 0x3b000000, v24")
    for j in range(8):
        a(f"v_sub_f32 v{32+j}, v{16+j}, v24")
    a("v_mul_f32 v27, v32, v32")
    for j in range(1, 8):
        a(f"v_fmac_f32 v27, v{32+j}, v{32+j}")
    a.wave_sum(27, 6, 25, 26)
    a("v_mul_f32 v27, 0x3b000000, v27")
    a.rbf(24, 24, 25)
    a.rbf(27, 27, 25)
    a("v_add_f32 v27, 0x3727c5ac, v27")
    a.rbf(27, 27, 25)
    a("v_sqrt_f32 v27, v27")
    a("s_nop 0")
    a.rbf(27, 27, 25)
    a("v_rcp_f32 v28, v27")
    a("s_nop 0")
    for j in range(8):
        a(f"v_sub_f32 v{32+j}, v{16+j}, v24")
        a.rbf(32 + j, 32 + j, 25)
        a(f"v_mul_f32 v{40+j}, v{32+j}, v28")
        a(f"v_fma_f32 v25, -v{40+j}, v27, v{32+j}")
        a(f"v_fma_f32 v{40+j}, v25, v28, v{40+j}")
    for j in range(4):
        a(f"v_cvt_pk_bf16_f32 v{48+j}, v{40+2*j}, v{41+2*j}")
    a("v_lshrrev_b32 v7, 4, v3")
    a("v_lshlrev_b32 v7, 14, v7")
    a("v_lshl_add_u32 v7, v1, 8, v7")
    a("v_and_b32 v25, 15, v3")
    a("v_lshl_add_u32 v7, v25, 4, v7")
    a("buffer_store_dwordx4 v[48:51], v7, s[20:23], 0 offen")
    a("s_waitcnt vmcnt(1)")
    for j in range(4):
        a(f"v_lshlrev_b32 v{16+2*j}, 16, v{48+j}")
        a(f"v_and_b32 v{17+2*j}, s30, v{48+j}")
        a(f"v_lshlrev_b32 v{32+2*j}, 16, v{12+j}")
        a(f"v_and_b32 v{33+2*j}, s30, v{12+j}")
    for j in range(8):
        a(f"v_mul_f32 v{16+j}, v{16+j}, v{32+j}")
    for j in range(4):
        a(f"v_cvt_pk_bf16_f32 v{52+j}, v{16+2*j}, v{17+2*j}")
    a("buffer_store_dwordx4 v[52:55], v4, s[24:27], 0 offen")
    a("s_endpgm")

    a.label("P_w1g")
    a("s_load_dwordx2 s[6:7], s[0:1], 80")
    a("s_load_dwordx2 s[8:9], s[0:1], 88")
    a("v_lshrrev_b32 v2, 6, v0")
    a("s_nop 0")
    a("v_readfirstlane_b32 s3, v2")
    a(f"s_sub_u32 s10, s2, {B_W1G}")
    a("s_lshl_b32 s10, s10, 2")
    a("s_add_u32 s10, s10, s3")
    a("s_and_b32 s11, s10, 31")
    a("s_lshr_b32 s10, s10, 5")
    a("s_cmp_ge_u32 s11, 28")
    a("s_cbranch_scc1 P_done")
    a("s_waitcnt lgkmcnt(0)")
    a.srd(12, 6, D * F * 2)
    a.srd(16, 8, D * F * 2)
    a.srd_off(20, 4, WS_W1, W1_BYTES)
    a("v_and_b32 v1, 63, v0")
    a("s_lshl_b32 s3, s11, 6")
    a("v_add_u32 v3, s3, v1")
    a("v_lshlrev_b32 v4, 1, v3")
    a(f"s_mul_i32 s28, s10, {8*F*2}")
    for e in range(8):
        a(f"s_add_u32 s{32+e}, s28, {e*F*2}")
    for e in range(8):
        a(f"buffer_load_ushort v{8+e}, v4, s[12:15], s{32+e} offen")
    for e in range(8):
        a(f"buffer_load_ushort v{16+e}, v4, s[16:19], s{32+e} offen")
    a("v_mul_u32_u24 v5, 9363, v3")
    a("v_lshrrev_b32 v5, 20, v5")
    a("v_mul_u32_u24 v6, 112, v5")
    a("v_sub_u32 v6, v3, v6")
    a("v_lshrrev_b32 v7, 3, v6")
    a("v_mul_u32_u24 v5, 18*16*1024, v5")
    a("v_lshl_add_u32 v5, v7, 10, v5")
    a("v_and_b32 v6, 7, v6")
    a("v_lshl_add_u32 v5, v6, 5, v5")
    a("s_lshr_b32 s29, s10, 2")
    a(f"s_mul_i32 s29, s29, {18*1024}")
    a("s_and_b32 s31, s10, 3")
    a("s_lshl_b32 s31, s31, 8")
    a("s_add_u32 s29, s29, s31")
    a(f"s_add_u32 s29, s29, {4*1024}")
    a("s_waitcnt vmcnt(8)")
    for j in range(4):
        a(f"v_lshl_or_b32 v{24+j}, v{9+2*j}, 16, v{8+2*j}")
    a("buffer_store_dwordx4 v[24:27], v5, s[20:23], s29 offen")
    a("s_waitcnt vmcnt(1)")
    for j in range(4):
        a(f"v_lshl_or_b32 v{28+j}, v{17+2*j}, 16, v{16+2*j}")
    a("buffer_store_dwordx4 v[28:31], v5, s[20:23], s29 offen offset:16")
    a("s_endpgm")

    a.label("P_w1s")
    a("s_load_dwordx2 s[6:7], s[0:1], 24")
    a("s_load_dwordx2 s[8:9], s[0:1], 32")
    a("s_load_dwordx2 s[40:41], s[0:1], 8")
    a("s_load_dwordx2 s[42:43], s[0:1], 16")
    a("s_load_dwordx2 s[44:45], s[0:1], 56")
    a("s_waitcnt lgkmcnt(0)")
    a.srd(12, 6, P * D * 2)
    a.srd(16, 8, P * D * 2)
    a.srd_off(20, 4, WS_W1, W1_BYTES)
    a.srd(24, 40, P * 2)
    a.srd(28, 42, P * 2)
    a.srd(32, 44, P * 2)
    a("v_and_b32 v1, 63, v0")
    a("v_lshrrev_b32 v2, 6, v0")
    a(f"s_sub_u32 s3, s2, {B_W1S}")
    a("s_lshl_b32 s3, s3, 2")
    a("v_add_u32 v3, s3, v2")
    a("v_lshlrev_b32 v4, 1, v3")
    a("buffer_load_ushort v8, v4, s[24:27], 0 offen")
    a("buffer_load_ushort v9, v4, s[28:31], 0 offen")
    a("buffer_load_ushort v10, v4, s[32:35], 0 offen")
    a("v_lshlrev_b32 v5, 10, v3")
    a("v_lshl_add_u32 v5, v1, 4, v5")
    a("buffer_load_dwordx4 v[12:15], v5, s[12:15], 0 offen")
    a("buffer_load_dwordx4 v[16:19], v5, s[16:19], 0 offen")
    a("s_waitcnt vmcnt(2)")
    emit_lambda_bar(a, lre=8, lim=9, ldt=10, out_re=20, out_im=21, t0=22, t1=23, t2=24)
    a("v_add_f32 v22, -1.0, v20")
    a("v_mul_f32 v23, v8, v8")
    a("v_fmac_f32 v23, v9, v9")
    a("v_rcp_f32 v23, v23")
    a("v_mul_f32 v26, v22, v8")
    a("v_fmac_f32 v26, v21, v9")
    a("v_mul_f32 v27, v21, v8")
    a("v_fma_f32 v27, -v22, v9, v27")
    a("v_mul_f32 v26, v26, v23")
    a("v_mul_f32 v27, v27, v23")
    a("s_mov_b32 s46, 0xffff0000")
    a("s_waitcnt vmcnt(0)")
    for j in range(4):
        a(f"v_lshlrev_b32 v{32+2*j}, 16, v{12+j}")
        a(f"v_and_b32 v{33+2*j}, s46, v{12+j}")
        a(f"v_lshlrev_b32 v{40+2*j}, 16, v{16+j}")
        a(f"v_and_b32 v{41+2*j}, s46, v{16+j}")
    for j in range(8):
        a(f"v_mul_f32 v{48+j}, v26, v{32+j}")
        a(f"v_fma_f32 v{48+j}, -v27, v{40+j}, v{48+j}")
        a(f"v_mul_f32 v{56+j}, v26, v{40+j}")
        a(f"v_fmac_f32 v{56+j}, v27, v{32+j}")
    for j in range(4):
        a(f"v_cvt_pk_bf16_f32 v{64+j}, v{48+2*j}, v{49+2*j}")
        a(f"v_cvt_pk_bf16_f32 v{68+j}, v{56+2*j}, v{57+2*j}")
    a("v_lshrrev_b32 v6, 5, v3")
    a("v_mul_u32_u24 v6, 18*16*1024, v6")
    a("v_lshrrev_b32 v7, 2, v1")
    a("v_mul_u32_u24 v7, 18*1024, v7")
    a("v_add_u32 v6, v6, v7")
    a("v_bfe_u32 v7, v3, 4, 1")
    a("v_lshl_add_u32 v6, v7, 11, v6")
    a("v_and_b32 v7, 15, v3")
    a("v_lshl_add_u32 v6, v7, 4, v6")
    a("v_and_b32 v7, 3, v1")
    a("v_lshl_add_u32 v6, v7, 8, v6")
    a("buffer_store_dwordx4 v[64:67], v6, s[20:23], 0 offen")
    a("buffer_store_dwordx4 v[68:71], v6, s[20:23], 0 offen offset:1024")
    a("s_endpgm")

    a.label("P_w2c")
    a("s_load_dwordx2 s[6:7], s[0:1], 40")
    a("s_load_dwordx2 s[8:9], s[0:1], 48")
    a("s_waitcnt lgkmcnt(0)")
    a.srd(12, 6, D * P * 2)
    a.srd(16, 8, D * P * 2)
    a.srd_off(20, 4, WS_W2C, W2C_BYTES)
    a("v_and_b32 v1, 127, v0")
    a("v_lshrrev_b32 v2, 7, v0")
    a(f"s_sub_u32 s3, s2, {B_W2C}")
    a("s_lshl_b32 s3, s3, 1")
    a("v_add_u32 v3, s3, v2")
    a("v_lshlrev_b32 v4, 10, v3")
    a("v_lshl_add_u32 v4, v1, 3, v4")
    a("buffer_load_dwordx2 v[8:9], v4, s[12:15], 0 offen")
    a("buffer_load_dwordx2 v[10:11], v4, s[16:19], 0 offen")
    a("v_lshrrev_b32 v5, 4, v3")
    a("v_lshlrev_b32 v5, 15, v5")
    a("v_lshl_add_u32 v5, v1, 8, v5")
    a("v_and_b32 v6, 15, v3")
    a("v_lshl_add_u32 v5, v6, 4, v5")
    a("s_mov_b32 s30, 0x05040100")
    a("s_mov_b32 s31, 0x07060302")
    a("s_mov_b32 s32, 0x80008000")
    a("s_waitcnt vmcnt(0)")
    a("v_xor_b32 v10, s32, v10")
    a("v_xor_b32 v11, s32, v11")
    a("v_perm_b32 v12, v10, v8, s30")
    a("v_perm_b32 v13, v10, v8, s31")
    a("v_perm_b32 v14, v11, v9, s30")
    a("v_perm_b32 v15, v11, v9, s31")
    a("buffer_store_dwordx4 v[12:15], v5, s[20:23], 0 offen")
    a("s_endpgm")

    a.label("P_w2d")
    a("s_load_dwordx2 s[6:7], s[0:1], 96")
    a("v_lshrrev_b32 v2, 6, v0")
    a("s_nop 0")
    a("v_readfirstlane_b32 s3, v2")
    a(f"s_sub_u32 s10, s2, {B_W2D}")
    a("s_lshl_b32 s10, s10, 2")
    a("s_add_u32 s10, s10, s3")
    a("s_and_b32 s11, s10, 7")
    a("s_lshr_b32 s10, s10, 3")
    a("s_waitcnt lgkmcnt(0)")
    a.srd(12, 6, F * D * 2)
    a.srd_off(20, 4, WS_W2D, W2D_BYTES)
    a("v_and_b32 v1, 63, v0")
    a("s_lshl_b32 s3, s11, 6")
    a("v_add_u32 v3, s3, v1")
    a("v_lshlrev_b32 v4, 1, v3")
    a("s_lshl_b32 s28, s10, 13")
    for e in range(8):
        a(f"s_add_u32 s{32+e}, s28, {e*D*2}")
    for e in range(8):
        a(f"buffer_load_ushort v{8+e}, v4, s[12:15], s{32+e} offen")
    a("v_lshrrev_b32 v5, 4, v3")
    a("v_mul_u32_u24 v5, 56*1024, v5")
    a("v_and_b32 v6, 15, v3")
    a("v_lshl_add_u32 v5, v6, 4, v5")
    a("s_lshl_b32 s29, s10, 8")
    a("s_waitcnt vmcnt(0)")
    for j in range(4):
        a(f"v_lshl_or_b32 v{24+j}, v{9+2*j}, 16, v{8+2*j}")
    a("buffer_store_dwordx4 v[24:27], v5, s[20:23], s29 offen")
    a.label("P_done")
    a("s_endpgm")
    return kernel_header(name) + a.text() + kernel_desc(name, 72, 48, 72)


def emit_lambda_bar(a, lre, lim, ldt, out_re, out_im, t0, t1, t2):
    a(f"v_lshlrev_b32 v{lre}, 16, v{lre}")
    a(f"v_lshlrev_b32 v{lim}, 16, v{lim}")
    a(f"v_lshlrev_b32 v{ldt}, 16, v{ldt}")
    a(f"v_mul_f32 v{t0}, 0x3fb8aa3b, v{ldt}")
    a(f"v_exp_f32 v{t0}, v{t0}")
    a("s_nop 0")
    a.rbf(t0, t0, t1)
    a(f"v_mul_f32 v{t1}, v{t0}, v{lre}")
    a(f"v_mul_f32 v{t2}, v{t0}, v{lim}")
    a(f"v_mul_f32 v{t1}, 0x3fb8aa3b, v{t1}")
    a(f"v_exp_f32 v{t1}, v{t1}")
    a(f"v_mul_f32 v{t2}, 0x3e22f983, v{t2}")
    a(f"v_fract_f32 v{t2}, v{t2}")
    a(f"v_cos_f32 v{out_re}, v{t2}")
    a(f"v_sin_f32 v{out_im}, v{t2}")
    a("s_nop 0")
    a(f"v_mul_f32 v{out_re}, v{out_re}, v{t1}")
    a(f"v_mul_f32 v{out_im}, v{out_im}, v{t1}")
```

```python
import sys, os
sys.path.insert(0, os.path.dirname(__file__))
from prep import gen_prep, PREP_WGS
from layout import *

HEADER = open('recurrent_scan__ssm_conv_s5__glu_gated_bilinear__prompt.s.ref').read().split('; @launch')[0]

def build(which=("prep","k1","k2")):
    out = HEADER
    body = ".amdgcn_target \"amdgcn-amd-amdhsa--gfx950\"\n"
    if "prep" in which:
        out += f"; @launch kernel=prep_kernel grid=({PREP_WGS},1,1) block=(256,1,1) lds=0\n"
        body += gen_prep()
    if "k1" in which:
        from k1 import gen_k1, K1_LDS
        out += f"; @launch kernel=k1_kernel grid=(256,1,1) block=(256,1,1) lds={K1_LDS}\n"
        body += gen_k1()
    if "k2" in which:
        from k2 import gen_k2, K2_LDS
        out += f"; @launch kernel=k2_kernel grid=(256,1,1) block=(256,1,1) lds={K2_LDS}\n"
        body += gen_k2()
    return out + body

if __name__ == "__main__":
    which = sys.argv[2].split(",") if len(sys.argv) > 2 else ("prep","k1","k2")
    open(sys.argv[1], "w").write(build(which))
```
